```python
import torch

def _softmax(x, axis=-1):
    return torch.softmax(x, dim=axis)
def _gelu(x):
    return torch.nn.functional.gelu(x, approximate="tanh")
def _silu(x):
    return torch.nn.functional.silu(x)
def _sigmoid(x):
    return torch.sigmoid(x)
def _layernorm(x, axis=-1, eps=1e-5):
    m = x.mean(dim=axis, keepdim=True)
    v = x.var(dim=axis, keepdim=True, unbiased=False)
    return (x - m) / torch.sqrt(v + eps)
def _scatter_add(tgt, idx, src, axis=0):
    return tgt.clone().index_add_(axis, idx, src)
def _segment_sum(src, seg, n):
    out = torch.zeros((n,) + src.shape[1:], dtype=src.dtype)
    return out.index_add_(0, seg, src)
def _pad(x, pw):
    flat = tuple(v for pair in reversed(pw) for v in pair)
    return torch.nn.functional.pad(x, flat)

kernel_name = 'concat_heads__gqa_block_cached__gqa_block_cached__near_ridge'

def setup_inputs():

    _w = (lambda a: (lambda t: t.to(torch.bfloat16) if t.is_floating_point() else t)(torch.as_tensor(a)))
    def _A_setup():
        B, Sq, D = 16, 32, 1024
        Hq, Hkv, Sk, Dh = 32, 4, 512, 128
        assert Hq % Hkv == 0, (Hq, Hkv)
        return {
            "x": _w((lambda *s: torch.randn(*s, dtype=torch.bfloat16) * 0.8)(B, Sq, D)),
            "k_cache": _w((lambda *s: torch.randn(*s, dtype=torch.bfloat16) * 0.8)(B, Hkv, Sk, Dh)),
            "v_cache": _w((lambda *s: torch.randn(*s, dtype=torch.bfloat16) * 0.05)(B, Hkv, Sk, Dh)),
            "wq": _w((lambda *s: torch.randn(*s, dtype=torch.bfloat16) * 0.8)(D, Hq * Dh) * (D ** -0.5)),
            "wo": _w((lambda *s: torch.randn(*s, dtype=torch.bfloat16) * 0.05)(Hq * Dh, D) * ((Hq * Dh) ** -0.5)),
        }
    _A_in = _A_setup()

    def _B_setup():
        B, Sq, D = 16, 32, 1024
        Hq, Hkv, Sk, Dh = 32, 4, 512, 128
        assert Hq % Hkv == 0, (Hq, Hkv)
        return {
            "x": _w((lambda *s: torch.randn(*s, dtype=torch.bfloat16) * 0.8)(B, Sq, D)),
            "k_cache": _w((lambda *s: torch.randn(*s, dtype=torch.bfloat16) * 0.8)(B, Hkv, Sk, Dh)),
            "v_cache": _w((lambda *s: torch.randn(*s, dtype=torch.bfloat16) * 0.05)(B, Hkv, Sk, Dh)),
            "wq": _w((lambda *s: torch.randn(*s, dtype=torch.bfloat16) * 0.8)(D, Hq * Dh) * (D ** -0.5)),
            "wo": _w((lambda *s: torch.randn(*s, dtype=torch.bfloat16) * 0.05)(Hq * Dh, D) * ((Hq * Dh) ** -0.5)),
        }
    _B_in = _B_setup()

    return {
        "A_x": _A_in["x"],
        "A_k_cache": _A_in["k_cache"],
        "A_v_cache": _A_in["v_cache"],
        "A_wq": _A_in["wq"],
        "A_wo": _A_in["wo"],
        "B_x": _B_in["x"],
        "B_k_cache": _B_in["k_cache"],
        "B_v_cache": _B_in["v_cache"],
        "B_wq": _B_in["wq"],
        "B_wo": _B_in["wo"],
    }

def reference(A_x, A_k_cache, A_v_cache, A_wq, A_wo, B_x, B_k_cache, B_v_cache, B_wq, B_wo):
    def _A_ref(x, k_cache, v_cache, wq, wo):
        B, Sq, D = x.shape
        Hq, Dh = 32, 128
        Hkv = k_cache.shape[1]
        rep = Hq // Hkv
        q = (lambda x, *d: x.permute(*d))((x @ wq).reshape(B, Sq, Hq, Dh), 0, 2, 1, 3)
        k = (lambda x, n, axis: torch.repeat_interleave(x, n, dim=axis))(k_cache, rep, axis=1)
        v = (lambda x, n, axis: torch.repeat_interleave(x, n, dim=axis))(v_cache, rep, axis=1)
        scores = torch.einsum("bhqd,bhkd->bhqk", q, k) * (Dh ** -0.5)
        p = _softmax(scores, axis=-1)
        o = torch.einsum("bhqk,bhkd->bhqd", p, v)
        return (lambda x, *d: x.permute(*d))(o, 0, 2, 1, 3).reshape(B, Sq, Hq * Dh) @ wo

    def _B_ref(x, k_cache, v_cache, wq, wo):
        B, Sq, D = x.shape
        Hq, Dh = 32, 128
        Hkv = k_cache.shape[1]
        rep = Hq // Hkv
        q = (lambda x, *d: x.permute(*d))((x @ wq).reshape(B, Sq, Hq, Dh), 0, 2, 1, 3)
        k = (lambda x, n, axis: torch.repeat_interleave(x, n, dim=axis))(k_cache, rep, axis=1)
        v = (lambda x, n, axis: torch.repeat_interleave(x, n, dim=axis))(v_cache, rep, axis=1)
        scores = torch.einsum("bhqd,bhkd->bhqk", q, k) * (Dh ** -0.5)
        p = _softmax(scores, axis=-1)
        o = torch.einsum("bhqk,bhkd->bhqd", p, v)
        return (lambda x, *d: x.permute(*d))(o, 0, 2, 1, 3).reshape(B, Sq, Hq * Dh) @ wo

    a = _A_ref(A_x, A_k_cache, A_v_cache, A_wq, A_wo)
    b = _B_ref(B_x, B_k_cache, B_v_cache, B_wq, B_wo)
    return torch.concatenate([a, b], axis=-1)
```

```python
import sys, math

KNAME = "concat_heads__gqa_block_cached__gqa_block_cached__near_ridge_kernel"
HEADER = open("concat_heads__gqa_block_cached__gqa_block_cached__near_ridge.s.ref").read().split("; Override launch")[0]

SLOT = 40960
NSLOT = 4
KV_G = 1088
KV_T = 8 * KV_G
O_BYTES = 8 << 20
FLAG_OFF = O_BYTES
STAMP_OFF = O_BYTES + (1 << 20)

class Cfg:
    aux_wq = ""; aux_x = ""; aux_kv = ""; aux_wo = ""
    stamps = False
    thr = 0x41000000
    ord1 = "round"
    ord2 = "round"
    ord3 = "round"
    thr0 = 6
    spin = 200000
    nodma = False
    cyc = False

class Emit:
    def __init__(self):
        self.L = []
    def __call__(self, s):
        for line in s.split("\n"):
            line = line.strip()
            if line:
                self.L.append(("" if line.endswith(":") else "    ") + line)
    def text(self):
        return "\n".join(self.L) + "\n"

def order(kind, own):
    if kind == "lock": return list(range(16))
    if kind == "round":
        o = [own]
        for t in range(16):
            c = t + 4 if (t & 3) == own else t
            if c < 16: o.append(c)
        assert sorted(o) == list(range(16))
        return o
    raise ValueError(kind)
def table(kind, own):
    v = 0
    for i, c in enumerate(order(kind, own)): v |= c << (4*i)
    return v & 0xffffffff, v >> 32

def vr(a, n): return f"v[{a}:{a+n-1}]"

def gen(cfg):
    E = Emit()
    sBR, sG, sBP, sHP, sW = 3, 4, 5, 6, 7
    X, WQ, KK, VV, WO = 44, 48, 52, 56, 60
    WS, OUT, DBG = 64, 68, 72
    def srd(b): return f"s[{b}:{b+3}]"
    nstamp = [0]
    def load_table(dst, kind, own):
        for o in range(4):
            lo, hi = table(kind, o)
            if o == 0:
                E(f"s_mov_b32 s{dst}, {lo:#x}\ns_mov_b32 s{dst+1}, {hi:#x}")
            else:
                E(f"s_cmp_eq_u32 s{own}, {o}\ns_cselect_b32 s{dst}, {lo:#x}, s{dst}\ns_cselect_b32 s{dst+1}, {hi:#x}, s{dst+1}")
    def pop_table(dst, tb):
        E(f"s_and_b32 s{dst}, s{tb}, 15\ns_lshr_b64 s[{tb}:{tb+1}], s[{tb}:{tb+1}], 4")
    def stamp(idx, role):
        if not cfg.stamps: return
        if idx == 8: E("s_mov_b32 s90, s96")
        else: E(f"s_memtime s[90:91]" if (idx >= 10 or cfg.cyc) else "s_memrealtime s[90:91]")
        E(f"s_waitcnt lgkmcnt(0)")
        E(f"v_mov_b32 v255, s90")
        E(f"s_lshl_b32 s92, s2, 3\ns_add_u32 s92, s92, s{sW}\ns_lshl_b32 s92, s92, 6\ns_add_u32 s92, s92, {STAMP_OFF + idx*4}")
        E(f"v_mov_b32 v254, 0")
        E(f"s_mov_b64 s[94:95], exec\ns_mov_b64 exec, 1")
        E(f"buffer_store_dword v255, v254, {srd(WS)}, s92 offen")
        E(f"s_mov_b64 exec, s[94:95]")

    E(f"{KNAME}:")
    E("s_cmp_ge_u32 s2, 256\ns_cbranch_scc1 L_end")
    if cfg.stamps: E("s_memtime s[96:97]" if cfg.cyc else "s_memrealtime s[96:97]")
    E("s_load_dwordx16 s[16:31], s[0:1], 0")
    E("s_load_dwordx8 s[32:39], s[0:1], 64")
    E("s_load_dwordx2 s[40:41], s[0:1], 96")
    E("v_lshrrev_b32 v1, 6, v0")
    E("v_and_b32 v0, 63, v0")
    E(f"s_bfe_u32 s{sBR}, s2, 0x10002")
    E(f"s_and_b32 s{sG}, s2, 3")
    E(f"v_readfirstlane_b32 s{sW}, v1")
    E(f"s_bfe_u32 s{sHP}, s2, 0x20003")
    E(f"s_lshr_b32 s{sBP}, s2, 5")
    E(f"s_cmp_lt_u32 s{sW}, 4\ns_cbranch_scc1 L_cons")

    sJ = 8
    vWQ, vX, vK, vV, vWO = 2, 3, 4, 5, 6
    E("s_setprio 3")
    E(f"s_sub_u32 s{sJ}, s{sW}, 4")
    E(f"s_and_b32 s9, s{sJ}, 1")
    E(f"v_lshrrev_b32 v10, 5, v0")
    E(f"s_lshl_b32 s10, s9, 3")
    E(f"v_lshl_add_u32 v11, v10, 2, s10")
    E(f"v_and_b32 v12, 31, v0")
    E(f"v_xor_b32 v12, v12, v11")
    E(f"v_lshlrev_b32 v12, 4, v12")
    E(f"v_lshl_add_u32 v{vWQ}, v10, 13, v12")
    E(f"v_lshrrev_b32 v10, 4, v0")
    E(f"s_lshl_b32 s10, s9, 2")
    E(f"v_add_u32 v11, s10, v10")
    E(f"v_and_b32 v12, 7, v0")
    E(f"v_xor_b32 v11, v12, v11")
    E(f"v_lshlrev_b32 v11, 4, v11")
    E(f"v_lshrrev_b32 v13, 3, v0")
    E(f"v_lshl_add_u32 v{vX}, v13, 11, v11")
    E(f"v_and_b32 v11, 15, v0")
    E(f"v_xor_b32 v11, v11, v10")
    E(f"v_lshlrev_b32 v11, 4, v11")
    E(f"v_lshl_add_u32 v{vK}, v10, 8, v11")
    E(f"v_lshlrev_b32 v{vV}, 4, v0")
    E(f"v_and_b32 v11, 1, v10")
    E(f"v_lshlrev_b32 v11, 2, v11")
    E(f"v_xor_b32 v11, v12, v11")
    E(f"v_lshlrev_b32 v11, 4, v11")
    E(f"v_lshl_add_u32 v{vWO}, v13, 11, v11")
    sWQB, sXB, sKVB, sWOB = 76, 77, 78, 79
    sC1 = sC2 = sC3 = 82
    sTB = 80
    sSL = 83
    sT, sT2, sCNT = 84, 85, 86
    E(f"s_lshl_b32 s{sWQB}, s{sJ}, 14")
    E(f"s_lshl_b32 s10, s{sG}, 11\ns_add_u32 s{sWQB}, s{sWQB}, s10")
    E(f"s_lshl_b32 s10, s{sHP}, 9\ns_add_u32 s{sWQB}, s{sWQB}, s10")
    E(f"s_lshl_b32 s{sXB}, s{sBP}, 17\ns_lshl_b32 s10, s{sJ}, 14\ns_add_u32 s{sXB}, s{sXB}, s10")
    E(f"s_lshl_b32 s{sKVB}, s{sBP}, 20\ns_lshl_b32 s10, s{sG}, 17\ns_add_u32 s{sKVB}, s{sKVB}, s10")
    E(f"s_lshl_b32 s10, s{sJ}, 11\ns_add_u32 s{sKVB}, s{sKVB}, s10")
    E(f"s_lshl_b32 s{sWOB}, s{sJ}, 14\ns_lshl_b32 s10, s{sG}, 9\ns_add_u32 s{sWOB}, s{sWOB}, s10")
    E(f"s_lshl_b32 s10, s{sHP}, 7\ns_add_u32 s{sWOB}, s{sWOB}, s10")
    sOWN = 13
    E(f"s_add_u32 s{sOWN}, s{sBP}, s{sHP}\ns_and_b32 s{sOWN}, s{sOWN}, 3")
    load_table(sTB, cfg.ord1, sOWN)
    E(f"s_lshl_b32 s11, s{sJ}, 10")
    E(f"s_mul_i32 s12, s{sJ}, {2*KV_G}")
    E(f"s_mov_b32 s{sSL}, 0")
    E("s_waitcnt lgkmcnt(0)")
    E(f"s_cmp_eq_u32 s{sBR}, 0")
    def mk_srd(d, a, b, size):
        E(f"s_cselect_b32 s{d}, s{a}, s{b}\ns_cselect_b32 s{d+1}, s{a+1}, s{b+1}\ns_mov_b32 s{d+2}, {size}\ns_mov_b32 s{d+3}, 0x20000")
    mk_srd(WQ, 22, 32, 8 << 20)
    mk_srd(X, 16, 26, 1 << 20)
    mk_srd(KK, 18, 28, 8 << 20)
    mk_srd(VV, 20, 30, 8 << 20)
    mk_srd(WO, 24, 34, 8 << 20)
    if cfg.stamps:
        E(f"s_mov_b32 s{WS}, s40\ns_mov_b32 s{WS+1}, s41\ns_mov_b32 s{WS+2}, {STAMP_OFF + (1<<20)}\ns_mov_b32 s{WS+3}, 0x20000")

    def next_slot():
        E(f"s_add_u32 s{sSL}, s{sSL}, {SLOT}")
        E(f"s_cmp_eq_u32 s{sSL}, {NSLOT*SLOT}")
        E(f"s_cselect_b32 s{sSL}, 0, s{sSL}")
    def issue_p1():
        pop_table(sC1, sTB)
        E(f"s_lshl_b32 s{sT}, s{sC1}, 19\ns_add_u32 s{sT}, s{sT}, s{sWQB}")
        E(f"s_add_u32 s{sT2}, s{sSL}, s11")
        for i in range(8):
            E(f"s_add_u32 m0, s{sT2}, {i*4096}")
            if i: E(f"s_add_u32 s{sT}, s{sT}, {8*8192}")
            else: E("s_nop 0")
            E(f"buffer_load_dwordx4 v{vWQ}, {srd(WQ)}, s{sT} offen {cfg.aux_wq} lds")
        E(f"s_lshl_b32 s{sT}, s{sC1}, 7\ns_add_u32 s{sT}, s{sT}, s{sXB}")
        for i in range(2):
            E(f"s_add_u32 m0, s{sT2}, {32768 + i*4096}")
            if i: E(f"s_add_u32 s{sT}, s{sT}, {32*2048}")
            else: E("s_nop 0")
            E(f"buffer_load_dwordx4 v{vX}, {srd(X)}, s{sT} offen {cfg.aux_x} lds")
        next_slot()
    def issue_kv(which, blk_sreg):
        base = 0 if which == "k" else 2*KV_T
        v = vK if which == "k" else vV
        s = KK if which == "k" else VV
        E(f"s_lshl_b32 s{sT}, s{blk_sreg}, 13\ns_add_u32 s{sT}, s{sT}, s{sKVB}")
        E(f"s_add_u32 s{sT2}, s{sSL}, s12")
        for bl in range(2):
            for i in range(2):
                E(f"s_add_u32 m0, s{sT2}, {base + bl*KV_T + i*KV_G}")
                if bl == 0 and i == 0: E("s_nop 0")
                elif i == 1: E(f"s_add_u32 s{sT}, s{sT}, 1024")
                else: E(f"s_add_u32 s{sT}, s{sT}, {4*512*256 - 1024}")
                E(f"buffer_load_dwordx4 v{v}, {srd(s)}, s{sT} offen {cfg.aux_kv} lds")
    def issue_p3():
        pop_table(sC3, sTB)
        E(f"s_lshl_b32 s{sT}, s{sC3}, 19\ns_add_u32 s{sT}, s{sT}, s{sWOB}")
        E(f"s_add_u32 s{sT2}, s{sSL}, s11")
        for i in range(8):
            E(f"s_add_u32 m0, s{sT2}, {i*4096}")
            if i: E(f"s_add_u32 s{sT}, s{sT}, {32*2048}")
            else: E("s_nop 0")
            E(f"buffer_load_dwordx4 v{vWO}, {srd(WO)}, s{sT} offen {cfg.aux_wo} lds")
        next_slot()

    E(f"s_mov_b32 s{sCNT}, 0")
    E("s_branch L_ldA_issue")
    E("L_ldA:")
    E("s_waitcnt vmcnt(20)")
    E("s_barrier")
    E("L_ldA_issue:")
    issue_p1()
    E(f"s_add_u32 s{sCNT}, s{sCNT}, 1")
    E(f"s_cmp_ge_u32 s{sCNT}, 3\ns_cbranch_scc1 L_ldA_chk")
    if cfg.thr0 is not None: E(f"s_waitcnt vmcnt({cfg.thr0})")
    E("s_branch L_ldA_issue")
    E("L_ldA_chk:")
    E(f"s_cmp_lt_u32 s{sCNT}, 16\ns_cbranch_scc1 L_ldA")
    E(f"s_mov_b32 s{sCNT}, 0")
    load_table(sTB, cfg.ord2, sOWN)
    E("L_ldB:")
    E("s_waitcnt vmcnt(12)")
    E("s_barrier")
    E(f"s_cmp_eq_u32 s{sCNT}, 0\ns_cbranch_scc1 L_ldB_noV")
    issue_kv("v", sC2)
    E("L_ldB_noV:")
    E(f"s_cmp_eq_u32 s{sCNT}, 16\ns_cbranch_scc1 L_ldB_noK")
    pop_table(sC2, sTB)
    issue_kv("k", sC2)
    E("L_ldB_noK:")
    next_slot()
    E(f"s_add_u32 s{sCNT}, s{sCNT}, 1")
    E(f"s_cmp_lt_u32 s{sCNT}, 17\ns_cbranch_scc1 L_ldB")
    load_table(sTB, cfg.ord3, sOWN)
    E(f"s_mov_b32 s{sCNT}, 0")
    E("L_ldC:")
    E("s_waitcnt vmcnt(12)")
    E("s_barrier")
    issue_p3()
    E(f"s_add_u32 s{sCNT}, s{sCNT}, 1")
    E(f"s_cmp_lt_u32 s{sCNT}, 16\ns_cbranch_scc1 L_ldC")
    E("s_waitcnt vmcnt(16)\ns_barrier")
    E("s_waitcnt vmcnt(8)\ns_barrier")
    E("s_waitcnt vmcnt(0)\ns_barrier")
    E("s_endpgm")

    E("L_cons:")
    sBL, sHL = 8, 9
    sSLc = 10
    sCt = 11
    sGRP = 12
    sTc, sTc2 = 13, 14
    sSC = 15
    E(f"s_and_b32 s{sBL}, s{sW}, 1\ns_lshr_b32 s{sHL}, s{sW}, 1")
    vH2, vR, vC, vG1, vQ = 2, 3, 4, 5, 6
    E(f"v_lshrrev_b32 v{vH2}, 5, v0")
    E(f"v_bfe_u32 v{vR}, v0, 2, 2")
    E(f"v_and_b32 v{vC}, 3, v0")
    E(f"v_bfe_u32 v{vG1}, v0, 4, 1")
    E(f"v_and_b32 v{vQ}, 31, v0")
    aWQ, aX, cWQ, cX = 8, 12, 16, 20
    E(f"v_lshl_add_u32 v24, v{vH2}, 3, v{vR}")
    E(f"v_lshlrev_b32 v24, 9, v24")
    E(f"v_and_b32 v25, 1, v{vC}")
    E(f"v_lshl_add_u32 v25, v{vG1}, 1, v25")
    E(f"v_lshl_add_u32 v24, v25, 4, v24")
    E(f"v_lshrrev_b32 v25, 1, v{vC}")
    E(f"v_lshl_add_u32 v24, v25, 3, v24")
    E(f"s_lshl_b32 s{sTc}, s{sHL}, 8")
    E(f"v_add_u32 v24, s{sTc}, v24")
    for db in range(4):
        E(f"v_xor_b32 v25, {db}, v{vR}")
        E(f"v_lshl_add_u32 v{aWQ+db}, v25, 6, v24")
    E(f"s_lshl_b32 s{sTc}, s{sBL}, 12\ns_add_u32 s{sTc}, s{sTc}, 32768")
    E(f"v_lshlrev_b32 v24, 7, v{vQ}")
    E(f"v_add_u32 v24, s{sTc}, v24")
    E(f"v_bfe_u32 v25, v{vQ}, 1, 3")
    E(f"v_xor_b32 v25, v25, v{vH2}")
    for ks in range(4):
        E(f"v_xor_b32 v26, {2*ks}, v25")
        E(f"v_lshl_add_u32 v{aX+ks}, v26, 4, v24")
    ACC = 64
    for i in range(64): E(f"v_mov_b32 v{ACC+i}, 0")
    E("s_waitcnt lgkmcnt(0)")
    E(f"s_mov_b32 s{WS}, s40\ns_mov_b32 s{WS+1}, s41\ns_mov_b32 s{WS+2}, {STAMP_OFF + (1<<20)}\ns_mov_b32 s{WS+3}, 0x20000")
    E(f"s_mov_b32 s{OUT}, s36\ns_mov_b32 s{OUT+1}, s37\ns_mov_b32 s{OUT+2}, {2<<20}\ns_mov_b32 s{OUT+3}, 0x20000")
    E(f"s_mov_b32 s{DBG}, s38\ns_mov_b32 s{DBG+1}, s39\ns_mov_b32 s{DBG+2}, 256\ns_mov_b32 s{DBG+3}, 0x20000")
    E(f"s_lshl_b32 s{sGRP}, s{sBR}, 3\ns_add_u32 s{sGRP}, s{sGRP}, s{sBP}")
    stamp(0, "c")
    stamp(8, "c")
    stamp(10, "c")
    sFB = 88
    E(f"s_lshl_b32 s{sFB}, s{sGRP}, 8\ns_add_u32 s{sFB}, s{sFB}, {FLAG_OFF}")
    sH0 = 89
    E(f"s_lshl_b32 s{sH0}, s{sG}, 3\ns_lshl_b32 s{sTc}, s{sHP}, 1\ns_add_u32 s{sH0}, s{sH0}, s{sTc}")
    E(f"s_cmp_lg_u32 s{sW}, 0\ns_cbranch_scc1 L_noinit")
    E(f"v_and_b32 v24, 1, v0\nv_lshlrev_b32 v24, 5, v24\nv_lshrrev_b32 v25, 1, v0\nv_add_u32 v24, v24, v25")
    E(f"v_add_u32 v24, s{sH0}, v24\nv_lshlrev_b32 v24, 2, v24\nv_mov_b32 v25, 0")
    E(f"s_mov_b64 exec, 15")
    E(f"buffer_store_dword v25, v24, {srd(WS)}, s{sFB} offen sc1")
    E(f"s_waitcnt vmcnt(0)")
    E(f"s_mov_b64 exec, 1")
    E(f"v_mov_b32 v26, 1")
    E(f"s_lshl_b32 s{sTc}, s{sGRP}, 4")
    E(f"buffer_atomic_add v26, v25, {srd(DBG)}, s{sTc} offen sc1")
    E(f"s_mov_b64 exec, -1")
    E("L_noinit:")

    FA = [128, 144]
    FB = [160, 164]
    def p1_reads(ks, buf):
        out = [f"ds_read_b128 {vr(FB[buf],4)}, v{cX+ks}"]
        for db in range(4):
            for t in range(2):
                out.append(f"ds_read_b64_tr_b16 {vr(FA[buf]+4*db+2*t,2)}, v{cWQ+db} offset:{ks*8192+t*2048}")
        return out
    def p1_mfma(db, buf):
        return f"v_mfma_f32_32x32x16_bf16 {vr(ACC+16*db,16)}, {vr(FA[buf]+4*db,4)}, {vr(FB[buf],4)}, {vr(ACC+16*db,16)}"
    def p1_group(buf, reads):
        n = len(reads)
        E("s_waitcnt lgkmcnt(6)")
        E(p1_mfma(0, buf))
        for r in reads[:5]: E(r)
        E(f"s_waitcnt lgkmcnt({min(5,n)+4})")
        E(p1_mfma(1, buf))
        for r in reads[5:]: E(r)
        E(f"s_waitcnt lgkmcnt({n+2})")
        E(p1_mfma(2, buf))
        E(f"s_waitcnt lgkmcnt({n})")
        E(p1_mfma(3, buf))
    def set_cur_p1():
        for i in range(8): E(f"v_add_u32 v{cWQ+i}, s{sSLc}, v{aWQ+i}")
    def next_slot_c():
        E(f"s_add_u32 s{sSLc}, s{sSLc}, {SLOT}")
        E(f"s_cmp_eq_u32 s{sSLc}, {NSLOT*SLOT}")
        E(f"s_cselect_b32 s{sSLc}, 0, s{sSLc}")
    E(f"s_mov_b32 s{sSLc}, 0")
    set_cur_p1()
    E(f"s_mov_b32 s{sCt}, 0")
    E("s_barrier")
    stamp(1, "c")
    for r in p1_reads(0, 0): E(r)
    E("L_p1:")
    p1_group(0, p1_reads(1, 1))
    p1_group(1, p1_reads(2, 0))
    p1_group(0, p1_reads(3, 1))
    next_slot_c()
    set_cur_p1()
    E("s_waitcnt lgkmcnt(0)")
    E("s_barrier")
    rr = p1_reads(0, 0)
    E(p1_mfma(0, 1))
    for r in rr[:5]: E(r)
    E(p1_mfma(1, 1))
    for r in rr[5:]: E(r)
    E(p1_mfma(2, 1))
    E(f"s_add_u32 s{sCt}, s{sCt}, 1")
    E(f"s_cmp_lt_u32 s{sCt}, 16")
    E(p1_mfma(3, 1))
    E("s_cbranch_scc1 L_p1")
    stamp(2, "c")

    QF = 32; S = [128, 144]; NM = 160; P = 176; KF = 184; VF = 216
    T0, T1, T2, T3 = 248, 249, 250, 251
    vL, vMX = 252, 253
    aK0, aK1, aV = 8, 9, 10
    cK0, cK1, cV = 11, 12, 13
    vCNT = 14
    E(f"v_mov_b32 v24, 0")
    E(f"s_lshl_b32 s{sTc}, s{sGRP}, 4")
    E(f"buffer_load_dword v{vCNT}, v24, {srd(DBG)}, s{sTc} offen sc1")
    E(f"v_lshl_add_u32 v24, v{vG1}, 2, v{vC}")
    E(f"v_mul_u32_u24 v24, {KV_G}, v24")
    E(f"v_lshl_add_u32 v24, v{vR}, 8, v24")
    E(f"s_mul_i32 s{sTc}, s{sBL}, {KV_T}")
    E(f"v_add_u32 v24, s{sTc}, v24")
    E(f"v_xor_b32 v25, v{vH2}, v{vR}")
    E(f"v_lshl_add_u32 v{aK0}, v25, 4, v24")
    E(f"v_xor_b32 v25, 2, v25")
    E(f"v_lshl_add_u32 v{aK1}, v25, 4, v24")
    E(f"v_mul_u32_u24 v24, {KV_G}, v{vR}")
    E(f"v_lshl_add_u32 v24, v{vH2}, 8, v24")
    E(f"v_lshl_add_u32 v24, v{vG1}, 5, v24")
    E(f"v_lshl_add_u32 v24, v{vC}, 3, v24")
    E(f"s_add_u32 s{sTc}, s{sTc}, {2*KV_T}")
    E(f"v_add_u32 v{aV}, s{sTc}, v24")
    def set_cur_p2():
        return [f"v_add_u32 v{cK0}, s{sSLc}, v{aK0}", f"v_add_u32 v{cK1}, s{sSLc}, v{aK1}", f"v_add_u32 v{cV}, s{sSLc}, v{aV}"]
    def k_read(s):
        return f"ds_read_b128 {vr(KF+4*s,4)}, v{cK0 if s%2==0 else cK1} offset:{(s>>1)*64}"
    def v_read(u, db, t):
        return f"ds_read_b64_tr_b16 {vr(VF+16*u+4*db+2*t,2)}, v{cV} offset:{u*4*KV_G + t*512 + db*64}"
    E("s_waitcnt lgkmcnt(0)")
    for x in set_cur_p2(): E(x)
    for s in range(8): E(k_read(s))
    qs = math.log2(math.e) / math.sqrt(128.0)
    import struct
    qsb = struct.unpack("<I", struct.pack("<f", qs))[0]
    E(f"s_mov_b32 s{sSC}, {qsb:#x}")
    E("s_nop 7")
    for i in range(32):
        E(f"v_mul_f32 v{ACC+2*i}, s{sSC}, v{ACC+2*i}")
        E(f"v_mul_f32 v{ACC+2*i+1}, s{sSC}, v{ACC+2*i+1}")
        E(f"v_cvt_pk_bf16_f32 v{QF+i}, v{ACC+2*i}, v{ACC+2*i+1}")
    for i in range(64): E(f"v_mov_b32 v{ACC+i}, 0")
    def qk(s, sb, first_c):
        c = first_c if s == 0 else vr(S[sb],16)
        return f"v_mfma_f32_32x32x16_bf16 {vr(S[sb],16)}, {vr(KF+4*s,4)}, {vr(QF+4*s,4)}, {c}"
    def pv(u, db):
        return f"v_mfma_f32_32x32x16_bf16 {vr(ACC+16*db,16)}, {vr(VF+16*u+4*db,4)}, {vr(P+4*u,4)}, {vr(ACC+16*db,16)}"
    E("s_waitcnt lgkmcnt(0)")
    for s in range(8): E(qk(s, 0, "0"))
    next_slot_c()
    for x in set_cur_p2(): E(x)
    E("s_barrier")
    for s in range(8): E(k_read(s))
    def maxchain(sb):
        b = S[sb]
        out = [f"v_max3_f32 v{vMX}, v{b}, v{b+1}, v{b+2}"]
        for i in range(3, 15, 2): out.append(f"v_max3_f32 v{vMX}, v{vMX}, v{b+i}, v{b+i+1}")
        out.append(f"v_max_f32 v{vMX}, v{vMX}, v{b+15}")
        return out
    E("s_nop 7")
    for x in maxchain(0): E(x)
    E(f"v_mov_b32 v{T0}, v{vMX}")
    E("s_nop 1")
    E(f"v_permlane32_swap_b32 v{T0}, v{vMX}")
    E(f"v_max_f32 v{vMX}, v{vMX}, v{T0}")
    for i in range(16): E(f"v_sub_f32 v{S[0]+i}, v{S[0]+i}, v{vMX}")
    for i in range(16): E(f"v_sub_f32 v{NM+i}, 0, v{vMX}")
    E(f"v_mov_b32 v{vL}, 0")
    E(f"s_mov_b32 s{sCt}, 0")

    def softmax_ops(sb):
        b = S[sb]
        ops = []
        for p in range(8):
            ta, tb = (T0, T1) if p % 2 == 0 else (T2, T3)
            ops.append([f"v_exp_f32 v{ta}, v{b+2*p}", f"v_exp_f32 v{tb}, v{b+2*p+1}",
                        f"v_add_f32 v{vL}, v{vL}, v{ta}", f"v_cvt_pk_bf16_f32 v{P+p}, v{ta}, v{tb}", f"v_add_f32 v{vL}, v{vL}, v{tb}"])
        return ops
    def p2_iter(cur, last, barrier):
        nx = 1 - cur
        sm = softmax_ops(cur)
        vr0 = [v_read(0, db, t) for db in range(4) for t in range(2)]
        vr1 = [v_read(1, db, t) for db in range(4) for t in range(2)]
        nds = 0
        for gi in range(8):
            if not last:
                E(f"s_waitcnt lgkmcnt({min(15, 7-gi+nds)})")
                E(qk(gi, nx, vr(NM,16)))
            E(vr0[gi]); nds += 1
            if gi < 6:
                for x in sm[gi]: E(x)
            else:
                E(vr1[2*(gi-6)]); E(vr1[2*(gi-6)+1]); nds += 2
        E("s_waitcnt lgkmcnt(2)")
        E(pv(0, 0))
        for x in sm[6]: E(x)
        E(vr1[4])
        E(pv(0, 1))
        for x in sm[7]: E(x)
        E(vr1[5])
        E(pv(0, 2))
        E(vr1[6]); E(vr1[7])
        if barrier:
            next_slot_c()
        E(pv(0, 3))
        mc = maxchain(nx) if not last else []
        if barrier:
            for x in set_cur_p2(): E(x)
        for x in mc[:2]: E(x)
        E("s_waitcnt lgkmcnt(0)")
        if barrier: E("s_barrier")
        kr = [k_read(s) for s in range(8)] if barrier else []
        for db in range(4):
            E(pv(1, db))
            for x in kr[2*db:2*db+2]: E(x)
            for x in mc[2+2*db-(0):2+2*db+2]: E(x)
        if not last:
            E(f"v_cmp_lt_f32 vcc, {cfg.thr:#x}, v{vMX}")
    def slow_path(lbl, ret, nx):
        E(f"{lbl}:")
        E("s_nop 15")
        E(f"v_mov_b32 v{T0}, v{vMX}")
        E("s_nop 1")
        E(f"v_permlane32_swap_b32 v{T0}, v{vMX}")
        E(f"v_max_f32 v{vMX}, v{vMX}, v{T0}")
        E(f"v_max_f32 v{vMX}, 0, v{vMX}")
        E(f"v_exp_f32 v{T0}, -v{vMX}")
        for i in range(16): E(f"v_sub_f32 v{S[nx]+i}, v{S[nx]+i}, v{vMX}")
        for i in range(16): E(f"v_sub_f32 v{NM+i}, v{NM+i}, v{vMX}")
        for i in range(64): E(f"v_mul_f32 v{ACC+i}, v{ACC+i}, v{T0}")
        E(f"v_mul_f32 v{vL}, v{vL}, v{T0}")
        E("s_nop 3")
        E(f"s_branch {ret}")
    E("L_p2:")
    p2_iter(0, False, True)
    E("s_cbranch_vccnz L_slow1")
    E("L_ret1:")
    E(f"s_cmp_eq_u32 s{sCt}, 7\ns_cbranch_scc1 L_p2_tail")
    p2_iter(1, False, True)
    E(f"s_add_u32 s{sCt}, s{sCt}, 1")
    E("s_cbranch_vccz L_p2")
    slow_path("L_slow0", "L_p2", 0)
    slow_path("L_slow1", "L_ret1", 1)
    E("L_p2_tail:")
    p2_iter(1, True, False)
    stamp(3, "c")

    E(f"v_mov_b32 v{T0}, v{vL}")
    E("s_nop 1")
    E(f"v_permlane32_swap_b32 v{T0}, v{vL}")
    E(f"v_add_f32 v{vL}, v{vL}, v{T0}")
    E(f"v_rcp_f32 v{vL}, v{vL}")
    vLane16 = 15
    E(f"v_lshlrev_b32 v{vLane16}, 4, v0")
    E(f"s_lshl_b32 s{sTc}, s{sGRP}, 1\ns_add_u32 s{sTc}, s{sTc}, s{sBL}\ns_lshl_b32 s{sTc}, s{sTc}, 5")
    E(f"s_add_u32 s{sTc}, s{sTc}, s{sH0}\ns_add_u32 s{sTc}, s{sTc}, s{sHL}\ns_lshl_b32 s{sTc}, s{sTc}, 13")
    E(f"s_add_u32 s{sTc2}, s{sTc}, 4096")
    E("s_nop 7")
    OB = 128
    for f in range(8):
        for i in range(4):
            a = ACC + 8*f + 2*i
            E(f"v_mul_f32 v{a}, v{a}, v{vL}")
            E(f"v_mul_f32 v{a+1}, v{a+1}, v{vL}")
            E(f"v_cvt_pk_bf16_f32 v{OB+4*f+i}, v{a}, v{a+1}")
        E(f"buffer_store_dwordx4 {vr(OB+4*f,4)}, v{vLane16}, {srd(WS)}, s{sTc if f<4 else sTc2} offen offset:{(f&3)*1024} sc1")
    aW0, aW1, cW0, cW1 = 8, 9, 10, 11
    E(f"v_lshl_add_u32 v24, v{vH2}, 2, v{vR}")
    E(f"v_lshlrev_b32 v24, 7, v24")
    E(f"s_lshl_b32 s{sTc}, s{sW}, 13")
    E(f"v_add_u32 v24, s{sTc}, v24")
    E(f"v_lshl_add_u32 v24, v{vG1}, 5, v24")
    E(f"v_lshl_add_u32 v24, v{vC}, 3, v24")
    E(f"v_lshrrev_b32 v25, 1, v{vR}")
    E(f"v_lshl_add_u32 v{aW0}, v25, 6, v24")
    E(f"v_xor_b32 v25, 1, v25")
    E(f"v_lshl_add_u32 v{aW1}, v25, 6, v24")
    for i in range(64): E(f"v_mov_b32 v{ACC+i}, 0")
    E(f"s_lshl_b32 s{sTc}, s{sBL}, 5\ns_add_u32 s{sTc}, s{sTc}, s{sH0}\ns_add_u32 s{sTc}, s{sTc}, s{sHL}\ns_lshl_b32 s{sTc}, s{sTc}, 2\ns_add_u32 s{sTc}, s{sTc}, s{sFB}")
    E(f"v_mov_b32 v24, 0\nv_mov_b32 v25, 1")
    E("s_waitcnt vmcnt(0)")
    stamp(4, "c")
    E(f"s_mov_b32 s{sCt}, {cfg.spin}")
    E("L_chk:")
    E(f"v_readfirstlane_b32 s{sTc2}, v{vCNT}")
    E(f"s_cmp_ge_u32 s{sTc2}, 16\ns_cbranch_scc1 L_chk_ok")
    E(f"s_lshl_b32 s{sTc2}, s{sGRP}, 4")
    E(f"buffer_load_dword v{vCNT}, v24, {srd(DBG)}, s{sTc2} offen sc1")
    E("s_waitcnt vmcnt(0)")
    E(f"s_sub_u32 s{sCt}, s{sCt}, 1\ns_cmp_lg_u32 s{sCt}, 0\ns_cbranch_scc1 L_chk")
    E("L_chk_ok:")
    E("s_mov_b64 exec, 1")
    E(f"buffer_store_dword v25, v24, {srd(WS)}, s{sTc} offen sc1")
    E("s_mov_b64 exec, -1")
    E(f"v_lshlrev_b32 v26, 2, v0")
    E(f"s_mov_b32 s{sCt}, {cfg.spin}")
    E("L_poll:")
    E(f"buffer_load_dword v27, v26, {srd(WS)}, s{sFB} offen sc1")
    E("s_waitcnt vmcnt(0)")
    E(f"v_cmp_eq_u32 vcc, 1, v27")
    E(f"s_cmp_eq_u64 vcc, exec\ns_cbranch_scc1 L_poll_ok")
    E("s_sleep 1")
    E(f"s_sub_u32 s{sCt}, s{sCt}, 1\ns_cmp_lg_u32 s{sCt}, 0\ns_cbranch_scc1 L_poll")
    E("L_poll_ok:")
    stamp(5, "c")

    OF = [128, 160, 192]
    WF = [224, 232]
    sC3c, sOB = 16, 17
    sTBc = 18
    E(f"s_add_u32 s{sTc}, s{sBP}, s{sHP}\ns_and_b32 s{sTc}, s{sTc}, 3")
    load_table(sTBc, cfg.ord3, sTc)
    E(f"s_lshl_b32 s{sOB}, s{sGRP}, 19\ns_lshl_b32 s{sTc}, s{sW}, 12\ns_add_u32 s{sOB}, s{sOB}, s{sTc}")
    def o_loads(buf):
        out = [f"s_and_b32 s{sC3c}, s{sTBc}, 15\ns_lshr_b64 s[{sTBc}:{sTBc+1}], s[{sTBc}:{sTBc+1}], 4\ns_lshl_b32 s{sTc}, s{sC3c}, 14\ns_add_u32 s{sTc}, s{sTc}, s{sOB}\ns_add_u32 s{sTc2}, s{sTc}, {32*8192}"]
        for ks in range(4):
            for mb in range(2):
                out.append(f"buffer_load_dwordx4 {vr(OF[buf]+16*mb+4*ks,4)}, v{vLane16}, {srd(WS)}, s{sTc if mb==0 else sTc2} offen offset:{ks*1024} sc1")
        return out
    def w_reads(ks, buf):
        return [f"ds_read_b64_tr_b16 {vr(WF[buf]+4*nb+2*t,2)}, v{cW0+nb} offset:{ks*2048+t*1024}" for nb in range(2) for t in range(2)]
    def p3_mfma(nb, mb, ks, wbuf, obuf):
        a = ACC + 16*(2*nb+mb)
        return f"v_mfma_f32_32x32x16_bf16 {vr(a,16)}, {vr(WF[wbuf]+4*nb,4)}, {vr(OF[obuf]+16*mb+4*ks,4)}, {vr(a,16)}"
    def set_cur_p3():
        E(f"v_add_u32 v{cW0}, s{sSLc}, v{aW0}\nv_add_u32 v{cW1}, s{sSLc}, v{aW1}")
    for x in o_loads(0): E(x)
    for x in o_loads(1): E(x)
    next_slot_c()
    set_cur_p3()
    E("s_barrier")
    for x in w_reads(0, 0): E(x)
    def p3_stage(obuf, load_next, barrier, vm):
        ol = o_loads((obuf+2) % 3) if load_next else []
        E(f"s_waitcnt vmcnt({vm})")
        for x in ol: E(x)
        for ks in range(4):
            wb = ks & 1
            if ks < 3:
                for x in w_reads(ks+1, 1-wb): E(x)
                E("s_waitcnt lgkmcnt(4)")
            else:
                E("s_waitcnt lgkmcnt(0)")
                if barrier:
                    next_slot_c()
                    set_cur_p3()
                    E("s_barrier")
                    for x in w_reads(0, 0): E(x)
            for nb in range(2):
                for mb in range(2):
                    E(p3_mfma(nb, mb, ks, wb, obuf))
    E(f"s_mov_b32 s{sCt}, 0")
    E("L_p3:")
    for ob in range(3): p3_stage(ob, True, True, 8)
    E(f"s_add_u32 s{sCt}, s{sCt}, 1\ns_cmp_lt_u32 s{sCt}, 4\ns_cbranch_scc1 L_p3")
    p3_stage(0, True, True, 8)
    p3_stage(1, True, True, 8)
    p3_stage(2, False, True, 8)
    p3_stage(0, False, False, 0)
    stamp(6, "c")
    RB = SLOT
    E(f"s_lshl_b32 s{sTc}, s{sW}, 12\ns_add_u32 s{sTc}, s{sTc}, {RB}")
    E(f"v_add_u32 v24, s{sTc}, v{vLane16}")
    E("s_nop 15")
    for T in range(4):
        for q in range(4):
            E(f"ds_write_b128 v24, {vr(ACC+16*T+4*q,4)} offset:{T*16384+q*1024}")
    E(f"s_lshl_b32 s{sTc}, s{sW}, 14\ns_add_u32 s{sTc}, s{sTc}, {RB}")
    E(f"v_add_u32 v25, s{sTc}, v{vLane16}")
    E("s_waitcnt lgkmcnt(0)")
    E("s_barrier")
    for src in range(4):
        for q in range(4):
            E(f"ds_read_b128 {vr(128+16*src+4*q,4)}, v25 offset:{src*4096+q*1024}")
    E(f"s_lshl_b32 s{sTc}, s{sBP}, 18")
    E(f"s_lshl_b32 s{sTc2}, s{sBL}, 17\ns_add_u32 s{sTc}, s{sTc}, s{sTc2}")
    E(f"s_lshl_b32 s{sTc2}, s{sBR}, 11\ns_add_u32 s{sTc}, s{sTc}, s{sTc2}")
    E(f"s_lshl_b32 s{sTc2}, s{sG}, 9\ns_add_u32 s{sTc}, s{sTc}, s{sTc2}")
    E(f"s_lshl_b32 s{sTc2}, s{sHP}, 7\ns_add_u32 s{sTc}, s{sTc}, s{sTc2}")
    E(f"s_lshl_b32 s{sTc2}, s{sHL}, 6\ns_add_u32 s{sTc}, s{sTc}, s{sTc2}")
    E(f"v_lshlrev_b32 v26, 12, v{vQ}")
    E(f"v_lshl_add_u32 v26, v{vH2}, 4, v26")
    E("s_waitcnt lgkmcnt(8)")
    for i in range(16): E(f"v_add_f32 v{128+i}, v{128+i}, v{144+i}")
    E("s_waitcnt lgkmcnt(0)")
    for i in range(16): E(f"v_add_f32 v{160+i}, v{160+i}, v{176+i}")
    for i in range(16): E(f"v_add_f32 v{128+i}, v{128+i}, v{160+i}")
    for i in range(8): E(f"v_cvt_pk_bf16_f32 v{192+i}, v{128+2*i}, v{128+2*i+1}")
    E("s_nop 1")
    for k in (0, 2):
        E(f"v_permlane32_swap_b32 v{192+2*k}, v{192+2*k+2}")
        E(f"v_permlane32_swap_b32 v{192+2*k+1}, v{192+2*k+3}")
    E(f"buffer_store_dwordx4 v[192:195], v26, {srd(OUT)}, s{sTc} offen")
    E(f"buffer_store_dwordx4 v[196:199], v26, {srd(OUT)}, s{sTc} offen offset:32")
    stamp(7, "c")
    stamp(11, "c")
    if cfg.stamps: E("s_waitcnt vmcnt(0)")
    stamp(9, "c")
    E("L_end:")
    E("s_endpgm")

    if cfg.nodma:
        E.L = [l for l in E.L if not l.rstrip().endswith(" lds")]
    body = E.text()
    txt = HEADER
    txt += f"; @launch grid=(256,1,1) block=(512,1,1) lds={NSLOT*SLOT}\n"
    txt += '.amdgcn_target "amdgcn-amd-amdhsa--gfx950"\n.text\n'
    txt += f".globl {KNAME}\n.p2align 8\n.type {KNAME},@function\n"
    txt += body
    txt += f'''.section .rodata,"a"
.p2align 6
.amdhsa_kernel {KNAME}
  .amdhsa_next_free_vgpr 256
  .amdhsa_next_free_sgpr 102
  .amdhsa_accum_offset 256
  .amdhsa_group_segment_fixed_size 0
  .amdhsa_kernarg_size 104
  .amdhsa_user_sgpr_count 2
  .amdhsa_user_sgpr_kernarg_segment_ptr 1
  .amdhsa_system_sgpr_workgroup_id_x 1
.end_amdhsa_kernel
'''
    return txt

if __name__ == "__main__":
    cfg = Cfg()
    out = "concat_heads__gqa_block_cached__gqa_block_cached__near_ridge.s"
    for a in sys.argv[1:]:
        k, v = a.split("=", 1)
        if k == "out": out = v
        else: setattr(cfg, k, eval(v))
    open(out, "w").write(gen(cfg))
    print("wrote", out)
```
